```python
import torch

def _softmax(x, axis=-1):
    return torch.softmax(x, dim=axis)
def _gelu(x):
    return torch.nn.functional.gelu(x, approximate="tanh")
def _silu(x):
    return torch.nn.functional.silu(x)
def _sigmoid(x):
    return torch.sigmoid(x)
def _layernorm(x, axis=-1, eps=1e-5):
    m = x.mean(dim=axis, keepdim=True)
    v = x.var(dim=axis, keepdim=True, unbiased=False)
    return (x - m) / torch.sqrt(v + eps)
def _scatter_add(tgt, idx, src, axis=0):
    return tgt.clone().index_add_(axis, idx, src)
def _segment_sum(src, seg, n):
    out = torch.zeros((n,) + src.shape[1:], dtype=src.dtype)
    return out.index_add_(0, seg, src)
def _pad(x, pw):
    flat = tuple(v for pair in reversed(pw) for v in pair)
    return torch.nn.functional.pad(x, flat)

kernel_name = 'concat_heads__gqa_block_cached__mha_block_cached__near_ridge'

def setup_inputs():

    _w = (lambda a: (lambda t: t.to(torch.bfloat16) if t.is_floating_point() else t)(torch.as_tensor(a)))
    def _A_setup():
        B, Sq, D = 16, 160, 512
        Hq, Hkv, Sk, Dh = 32, 32, 512, 128
        assert Hq % Hkv == 0, (Hq, Hkv)
        return {
            "x": _w((lambda *s: torch.randn(*s, dtype=torch.bfloat16) * 0.8)(B, Sq, D)),
            "k_cache": _w((lambda *s: torch.randn(*s, dtype=torch.bfloat16) * 0.8)(B, Hkv, Sk, Dh)),
            "v_cache": _w((lambda *s: torch.randn(*s, dtype=torch.bfloat16) * 0.05)(B, Hkv, Sk, Dh)),
            "wq": _w((lambda *s: torch.randn(*s, dtype=torch.bfloat16) * 0.8)(D, Hq * Dh) * (D ** -0.5)),
            "wo": _w((lambda *s: torch.randn(*s, dtype=torch.bfloat16) * 0.05)(Hq * Dh, D) * ((Hq * Dh) ** -0.5)),
        }
    _A_in = _A_setup()

    def _B_setup():
        B, Sq, D = 16, 160, 512
        H, Sk, Dh = 32, 512, 128
        return {
            "x": _w((lambda *s: torch.randn(*s, dtype=torch.bfloat16) * 0.8)(B, Sq, D)),
            "k_cache": _w((lambda *s: torch.randn(*s, dtype=torch.bfloat16) * 0.8)(B, H, Sk, Dh)),
            "v_cache": _w((lambda *s: torch.randn(*s, dtype=torch.bfloat16) * 0.05)(B, H, Sk, Dh)),
            "wq": _w((lambda *s: torch.randn(*s, dtype=torch.bfloat16) * 0.8)(D, H * Dh) * (D ** -0.5)),
            "wo": _w((lambda *s: torch.randn(*s, dtype=torch.bfloat16) * 0.05)(H * Dh, D) * ((H * Dh) ** -0.5)),
        }
    _B_in = _B_setup()

    return {
        "A_x": _A_in["x"],
        "A_k_cache": _A_in["k_cache"],
        "A_v_cache": _A_in["v_cache"],
        "A_wq": _A_in["wq"],
        "A_wo": _A_in["wo"],
        "B_x": _B_in["x"],
        "B_k_cache": _B_in["k_cache"],
        "B_v_cache": _B_in["v_cache"],
        "B_wq": _B_in["wq"],
        "B_wo": _B_in["wo"],
    }

def reference(A_x, A_k_cache, A_v_cache, A_wq, A_wo, B_x, B_k_cache, B_v_cache, B_wq, B_wo):
    def _A_ref(x, k_cache, v_cache, wq, wo):
        B, Sq, D = x.shape
        Hq, Dh = 32, 128
        Hkv = k_cache.shape[1]
        rep = Hq // Hkv
        q = (lambda x, *d: x.permute(*d))((x @ wq).reshape(B, Sq, Hq, Dh), 0, 2, 1, 3)
        k = (lambda x, n, axis: torch.repeat_interleave(x, n, dim=axis))(k_cache, rep, axis=1)
        v = (lambda x, n, axis: torch.repeat_interleave(x, n, dim=axis))(v_cache, rep, axis=1)
        scores = torch.einsum("bhqd,bhkd->bhqk", q, k) * (Dh ** -0.5)
        p = _softmax(scores, axis=-1)
        o = torch.einsum("bhqk,bhkd->bhqd", p, v)
        return (lambda x, *d: x.permute(*d))(o, 0, 2, 1, 3).reshape(B, Sq, Hq * Dh) @ wo

    def _B_ref(x, k_cache, v_cache, wq, wo):
        B, Sq, D = x.shape
        H, Dh = 32, 128
        q = (lambda x, *d: x.permute(*d))((x @ wq).reshape(B, Sq, H, Dh), 0, 2, 1, 3)
        scores = torch.einsum("bhqd,bhkd->bhqk", q, k_cache) * (Dh ** -0.5)
        p = _softmax(scores, axis=-1)
        o = torch.einsum("bhqk,bhkd->bhqd", p, v_cache)
        return (lambda x, *d: x.permute(*d))(o, 0, 2, 1, 3).reshape(B, Sq, H * Dh) @ wo

    a = _A_ref(A_x, A_k_cache, A_v_cache, A_wq, A_wo)
    b = _B_ref(B_x, B_k_cache, B_v_cache, B_wq, B_wo)
    return torch.concatenate([a, b], axis=-1)
```

```python
def R(a, n=1):
    return list(range(a, a + n))
def vr(a, n):
    return f"v{a}" if n == 1 else f"v[{a}:{a+n-1}]"

class I:
    __slots__ = ("text", "kind", "r", "w", "c", "m0")
    def __init__(self, text, kind, r=(), w=(), c=(), m0=False):
        self.text = text; self.kind = kind
        self.r = set(r); self.w = set(w); self.c = tuple(c); self.m0 = m0

def mfma(d, a, b, c=None):
    if c is None: c = d
    if c == '0':
        return I(f"v_mfma_f32_16x16x32_bf16 {vr(d,4)}, {vr(a,4)}, {vr(b,4)}, 0", "mfma", R(a,4)+R(b,4), R(d,4))
    return I(f"v_mfma_f32_16x16x32_bf16 {vr(d,4)}, {vr(a,4)}, {vr(b,4)}, {vr(c,4)}", "mfma", R(a,4)+R(b,4), R(d,4), R(c,4))

def _src(x):
    return (f"v{x}", [x]) if isinstance(x, int) else (str(x), [])
def valu(op, d, *srcs, kind="valu"):
    t = []; r = []
    for s in srcs:
        a, b = _src(s); t.append(a); r += b
    return I(f"{op} v{d}, " + ", ".join(t), kind, r, [d])
def trans(op, d, s): return valu(op, d, s, kind="trans")
def pkmul(d, s, f):
    if isinstance(f, int):
        base = f & ~1
        sel = "op_sel:[0,1] op_sel_hi:[1,1]" if f & 1 else "op_sel_hi:[1,0]"
        return I(f"v_pk_mul_f32 {vr(d,2)}, {vr(s,2)}, {vr(base,2)} {sel}", "valu", R(s,2)+[f], R(d,2))
    return I(f"v_pk_mul_f32 {vr(d,2)}, {vr(s,2)}, {f} op_sel_hi:[1,0]", "valu", R(s,2), R(d,2))
def perm(op, a, b): return I(f"{op} v{a}, v{b}", "perm", [a, b], [a, b])
def ds_r128(d, addr, off): return I(f"ds_read_b128 {vr(d,4)}, v{addr} offset:{off}", "ds_r", [addr], R(d,4))
def ds_rtr(d, addr, off): return I(f"ds_read_b64_tr_b16 {vr(d,2)}, v{addr} offset:{off}", "ds_r", [addr], R(d,2))
def ds_r32(d, addr, off): return I(f"ds_read_b32 v{d}, v{addr} offset:{off}", "ds_r", [addr], [d])
def ds_w64(addr, s, off): return I(f"ds_write_b64 v{addr}, {vr(s,2)} offset:{off}", "ds_w", [addr]+R(s,2))
def ds_w128(addr, s, off): return I(f"ds_write_b128 v{addr}, {vr(s,4)} offset:{off}", "ds_w", [addr]+R(s,4))
def ds_w32(addr, s, off): return I(f"ds_write_b32 v{addr}, v{s} offset:{off}", "ds_w", [addr, s])
def dma(vo, srd, so, off=0, flags=""):
    o = f" offset:{off}" if off else ""
    return I(f"buffer_load_dwordx4 v{vo}, s[{srd}:{srd+3}], {so} offen{o}{flags} lds", "dma", [vo])
def bload(d, n, vo, srd, so, off=0, flags=""):
    o = f" offset:{off}" if off else ""
    op = {1: "dword", 2: "dwordx2", 4: "dwordx4"}[n]
    return I(f"buffer_load_{op} {vr(d,n)}, v{vo}, s[{srd}:{srd+3}], {so} offen{o}{flags}", "vld", [vo], R(d,n))
def bstore(s, n, vo, srd, so, off=0, flags=""):
    o = f" offset:{off}" if off else ""
    op = {1: "dword", 2: "dwordx2", 4: "dwordx4"}[n]
    return I(f"buffer_store_{op} {vr(s,n)}, v{vo}, s[{srd}:{srd+3}], {so} offen{o}{flags}", "vst", [vo]+R(s,n), c=R(s,n) if n == 4 else ())
def salu(text): return I(text, "salu", m0=text.replace(",", " ").split()[1] == "m0")
def raw(text, kind="salu", r=(), w=()): return I(text, kind, r, w)
def wait(vm=None, lgkm=None):
    t = "s_waitcnt" + (f" vmcnt({vm})" if vm is not None else "") + (f" lgkmcnt({lgkm})" if lgkm is not None else "")
    i = I(t, "wait"); i.c = (lgkm,); return i
def barrier(): return I("s_barrier", "bar")
def label(n): return I(f"{n}:", "label")

class Fixer:
    def __init__(self): self.reset()
    def reset(self, mfma_recent=(), age=2):
        self.t = 100
        self.vw = {}; self.tw = {}; self.mw = {}; self.mc = {}; self.sd = {}; self.m0 = -100
        self.q = []
        for r in mfma_recent: self.mw[r] = (self.t - 1 - age, None)
        self.nops = 0
    def run(self, ins):
        out = []
        for i in ins:
            k = i.kind
            if k == "label":
                out.append(i.text); continue
            touched = i.r | i.w | set(i.c if k == "mfma" else ())
            idx = -1
            for n, dst in enumerate(self.q):
                if dst & touched: idx = n
            if idx >= 0:
                cnt = len(self.q) - 1 - idx
                out.append(f"    s_waitcnt lgkmcnt({min(cnt,15)})"); self.t += 1
                self.q = self.q[idx+1:]
            need = 0
            def chk(tab, regs, dist, tup=False):
                nonlocal need
                for r in regs:
                    if r in tab:
                        tp = tab[r][0] if tup else tab[r]
                        need = max(need, dist - (self.t - tp - 1))
            if k == "mfma":
                chk(self.vw, i.r | set(i.c), 2)
                chk(self.mw, i.r, 8, True)
                blk = tuple(sorted(i.c))
                for r in i.c:
                    if r in self.mw and self.mw[r][1] != blk:
                        need = max(need, 6 - (self.t - self.mw[r][0] - 1))
                chk(self.sd, i.w, 1)
            elif k in ("valu", "trans", "perm"):
                chk(self.mw, i.r | i.w, 8, True)
                chk(self.mc, i.w, 3)
                chk(self.sd, i.w, 2)
                if k != "trans": chk(self.tw, i.r, 1)
                if k == "perm": chk(self.vw, i.r, 2)
            elif k in ("ds_r", "ds_w", "vld", "vst", "dma"):
                chk(self.mw, i.r | i.w, 8, True)
                chk(self.tw, i.r, 1)
                chk(self.sd, i.w, 1)
                if k == "dma": need = max(need, 1 - (self.t - self.m0 - 1))
            elif k == "rfl":
                chk(self.vw, i.r, 1); chk(self.mw, i.r, 8, True)
            if need > 0:
                out.append(f"    s_nop {need-1}"); self.t += need; self.nops += need
            out.append("    " + i.text)
            if k == "mfma":
                blk = tuple(sorted(i.w))
                for r in i.w: self.mw[r] = (self.t, blk); self.vw.pop(r, None); self.tw.pop(r, None)
                for r in i.c: self.mc[r] = self.t
            elif k in ("valu", "trans", "perm"):
                for r in i.w:
                    self.vw[r] = self.t; self.mw.pop(r, None)
                    if k == "trans": self.tw[r] = self.t
                    else: self.tw.pop(r, None)
            elif k == "ds_r": self.q.append(set(i.w))
            elif k == "ds_w": self.q.append(set())
            elif k == "vst":
                for r in i.c: self.sd[r] = self.t
            elif k == "wait":
                l = i.c[0]
                if l is not None: self.q = self.q[len(self.q)-l:] if l else []
            if i.m0: self.m0 = self.t
            if i.text.startswith("s_nop"): self.t += int(i.text.split()[1])
            self.t += 1
        return out

class Weave:
    def __init__(self, backbone):
        self.b = list(backbone); self.s = [[] for _ in range(len(self.b) + 1)]
    def put(self, slot, ins):
        slot = max(0, min(slot, len(self.b)))
        self.s[slot].extend(ins if isinstance(ins, list) else [ins])
    def spread(self, ins, lo, hi):
        lo = max(0, min(lo, len(self.b))); hi = max(lo, min(hi, len(self.b)))
        n = len(ins); m = hi - lo + 1
        for k, x in enumerate(ins):
            self.put(lo + (k * m) // n, x)
    def flat(self):
        out = []
        for k in range(len(self.b) + 1):
            out += self.s[k]
            if k < len(self.b): out.append(self.b[k])
        return out
```

```python
import sys, math, struct
from asmlib import *

NAME = "concat_heads__gqa_block_cached__mha_block_cached__near_ridge"
KV_PSTRIDE = 8224
WQ_BASE = 65760
X_BASE = 90544
MB = 121264
LDS1 = 163840
def wpad(p): return (p >> 1) * 64 + (p & 1) * 16
CSCALE = math.log2(math.e) / math.sqrt(128.0)
def f2u(x): return struct.unpack("<I", struct.pack("<f", x))[0]

S_KV, S_WQ, S_X, S_O = 8, 12, 16, 20
S_BLK, S_B, S_JJ, S_WAVE = 30, 31, 32, 34

class Out:
    def __init__(self): self.l = []
    def t(self, s):
        for x in s.strip("\n").split("\n"): self.l.append(x)
    def block(self, ins, recent=(), name=""):
        f = Fixer(); f.reset(recent)
        o = f.run(ins)
        self.l += o
    def text(self): return "\n".join(self.l) + "\n"

class AW:
    def __init__(s, NQ):
        s.NQ = NQ
        s.O = lambda q, T: q * 32 + T * 4
        s.Q = lambda q, ks: 96 + q * 16 + ks * 4
        s.SA = lambda q: 144 + q * 4
        s.SB = lambda q: 156 + q * 4
        s.NM = lambda q: 168 + q * 4
        s.P = lambda st, q: 180 + st * 12 + q * 4
        s.X = lambda j: 204 + j * 4
        s.Y = lambda j: 220 + j * 4
        s.KA, s.VA, s.L16, s.MBA = 236, 237, 238, 239
        s.L = lambda q: 240 + q
        s.RL = lambda q: 243 + q
        s.T = lambda q: 246 + q
    def pv(s, half, pset, zero):
        return [mfma(s.O(q, half * 4 + j), s.Y(j), s.P(pset, q), '0' if zero else None)
                for j in range(4) for q in range(s.NQ)]
    def qk(s, S, zero):
        out = []
        for ks in range(4):
            for q in range(s.NQ):
                c = None if ks else ('0' if zero else s.NM(q))
                out.append(mfma(S(q), s.X(ks), s.Q(q, ks), c))
        return out
    def kreads(s, kt, slotbit):
        return [ds_r128(s.X(ks), s.KA, slotbit * 1024 + kt * 512 + ks * 64) for ks in range(4)]
    def vreads(s, half, slotbit):
        out = []
        for j in range(4):
            for hh in range(2):
                out.append(ds_rtr(s.Y(j) + 2 * hh, s.VA, slotbit * 1024 + hh * 512 + (half * 4 + j) * 32))
        return out
    def sm(s, S, pset, off, init=False):
        ex = []; post = []
        for q in range(s.NQ):
            b = S(q); l = s.L(q); p = s.P(pset, q) + off
            ex.append([trans("v_exp_f32", b + i, b + i) for i in range(4)])
            if init:
                a = [valu("v_add_f32", l, b, b + 1), None]
            else:
                a = [valu("v_add_f32", l, l, b), valu("v_add_f32", l, l, b + 1)]
            po = [a[0], a[1], valu("v_cvt_pk_bf16_f32", p, b, b + 1),
                  valu("v_add_f32", l, l, b + 2), valu("v_add_f32", l, l, b + 3),
                  valu("v_cvt_pk_bf16_f32", p + 1, b + 2, b + 3)]
            post.append([x for x in po if x is not None])
        out = list(ex[0])
        for q in range(s.NQ):
            nx = ex[q + 1] if q + 1 < s.NQ else []
            po = post[q]
            k = 0
            for i, x in enumerate(po):
                out.append(x)
                while k < len(nx) and k * len(po) < (i + 1) * len(nx):
                    out.append(nx[k]); k += 1
        return out
    def maxchain(s):
        seqs = []
        for q in range(s.NQ):
            b = s.SA(q); n = s.NM(q)
            seqs.append([valu("v_max3_f32", n, b, b + 1, b + 2), valu("v_max_f32", n, n, b + 3),
                         valu("v_mov_b32", n + 1, n), perm("v_permlane16_swap_b32", n, n + 1),
                         valu("v_max_f32", n, n, n + 1), valu("v_mov_b32", n + 1, n),
                         perm("v_permlane32_swap_b32", n, n + 1), valu("v_max_f32", n + 3, n, n + 1),
                         valu("v_sub_f32", n, "0", n + 3), valu("v_sub_f32", n + 1, "0", n + 3),
                         valu("v_sub_f32", n + 2, "0", n + 3), valu("v_sub_f32", n + 3, "0", n + 3)])
        out = [x for grp in zip(*seqs) for x in grp]
        subs = [valu("v_add_f32", s.SA(q) + i, s.SA(q) + i, s.NM(q)) for q in range(s.NQ) for i in range(4)]
        return out, subs
    def lreduce(s):
        seqs = []
        for q in range(s.NQ):
            l, r, t = s.L(q), s.RL(q), s.T(q)
            seqs.append([valu("v_mov_b32", r, l), valu("v_mov_b32", t, l), perm("v_permlane16_swap_b32", r, t),
                         valu("v_add_f32", r, r, t), valu("v_mov_b32", t, r), perm("v_permlane32_swap_b32", r, t),
                         valu("v_add_f32", r, r, t),
                         raw(f"v_cmp_ngt_f32 vcc, s56, v{r}", "valu", [r], []),
                         raw("s_or_b64 s[48:49], s[48:49], vcc"),
                         trans("v_rcp_f32", r, r)])
        a = [x for grp in zip(*[q[:7] for q in seqs]) for x in grp]
        b = [x for q in seqs for x in q[7:]]
        return a[:2 * s.NQ], a[2 * s.NQ:] + b
    def epi(s, half):
        out = []
        for kk in range(2):
            ks = half * 2 + kk
            for q in range(s.NQ):
                o = s.O(q, 2 * ks)
                out += [valu("v_mul_f32", o + i, o + i, s.RL(q)) for i in range(8)]
                out += [valu("v_cvt_pk_bf16_f32", o + i, o + 2 * i, o + 2 * i + 1) for i in range(4)]
                out.append(bstore(o, 4, s.L16, S_O, f"s{52+ks}", q * 1024))
        return out
    def epoch(s, par, t, prev=True, cur=True, nxt=True, bar=True):
        NQ = s.NQ; n = 4 * NQ
        first, second, last = t == 0, t == 1, t == 15
        has4 = not (first and not prev) and not (last and not cur)
        hasqk = not (last and not nxt) and not (first and not cur)
        has2 = cur
        m4 = s.pv(1, 1 - par, second) if has4 else []
        m1 = s.qk(s.SA, last) if hasqk else []
        m2 = s.pv(0, par, first) if has2 else []
        m3 = s.qk(s.SB, False) if hasqk else []
        W = Weave(m4 + m1 + m2 + m3)
        a1 = len(m4); a2 = a1 + len(m1); a3 = a2 + len(m2); a4 = a3 + len(m3)
        kb, vb = 1 - par, par
        if hasqk:
            kr = s.kreads(0, kb)
            if last:
                rd = []
                for ks in range(4):
                    rd.append(kr[ks])
                    rd += [ds_r128(s.Q(q, ks), s.MBA, (q * 4 + ks) * 1024) for q in range(NQ)]
                W.spread(rd, 0, max(0, a1 - 2))
            else:
                W.spread(kr, 0, 3 if m4 else 0)
        if has2:
            W.spread(s.vreads(0, vb), a1, a1 + 3 if m1 else a1)
        if hasqk:
            W.spread(s.kreads(1, kb), a2, a2 + 3 if m2 else a2)
        if has2:
            W.spread(s.vreads(1, vb), a3, a3 + 3 if m3 else a3)
        d1 = []
        if cur: d1 = s.sm(s.SB, par, 2)
        d2 = []
        if last:
            if cur:
                W.spread(d1, 2, a2 - 1)
                la, lb = s.lreduce()
                W.put(a2, la)
            if nxt:
                mc, subs = s.maxchain()
                if m2: W.spread(mc, a2 + 2, a3 - 1)
                else: W.put(a3, mc)
                d2 = subs + s.sm(s.SA, 1 - par, 0, init=True)
                if cur: d2 = lb + d2
                W.spread(d2, a3, a4)
            else:
                W.spread(lb, a2 + 1, a3)
            if cur:
                W.put(a2, [salu("s_mov_b32 s52, s57"), salu("s_add_u32 s53, s57, 10240"),
                           salu("s_add_u32 s54, s57, 20480"), salu("s_add_u32 s55, s57, 30720"),
                           salu("s_add_u32 s57, s57, 327680")])
        elif first:
            ea = s.epi(0) if prev else []
            eb = s.epi(1) if prev else []
            if cur:
                W.spread(merge(d1, ea), 1, a2 - 1)
                d2 = s.sm(s.SA, 1 - par, 0)
                h = len(eb) // 4
                W.spread(eb[:h], a2, a2 + 2)
                W.spread(merge(d2, eb[h:]), a2 + 3, a4)
            else:
                W.spread(ea, 0, a1)
                W.put(a1, eb)
        else:
            W.spread(d1, 2, a2 - 1)
            d2 = s.sm(s.SA, 1 - par, 0)
            W.spread(d2, a2 + 3, a4)
        ins = W.flat()
        if par == 0: ins.append(valu("v_xor_b32", s.KA, "0x800", s.KA))
        else: ins.append(valu("v_xor_b32", s.VA, "0x800", s.VA))
        if bar:
            ins.append(wait(lgkm=0)); ins.append(barrier())
        return ins
    def recent(s):
        return [s.SB(q) + i for q in range(s.NQ) for i in range(4)] + \
               [s.O(q, T) + i for q in range(s.NQ) for T in range(4) for i in range(4)]

def merge(a, b):
    out = []; i = j = 0
    while i < len(a) or j < len(b):
        if j >= len(b) or (i < len(a) and (i + 0.5) * len(b) <= (j + 0.5) * len(a)):
            out.append(a[i]); i += 1
        else:
            out.append(b[j]); j += 1
    return out

def gen_attn(o, NQ, tag):
    a = AW(NQ)
    rec = a.recent()
    o.t(f"L_{tag}:")
    if NQ == 3: o.t(f"    s_mul_i32 s35, s{S_WAVE}, 3")
    else: o.t(f"    s_lshl_b32 s35, s{S_WAVE}, 1\n    s_add_u32 s35, s35, 2")
    o.t(f"""
    v_and_b32 v250, 63, v0                 ; lane
    v_and_b32 v251, 7, v250                ; m&7
    v_mul_u32_u24 v{a.KA}, {KV_PSTRIDE}, v251
    v_bfe_u32 v251, v250, 3, 1             ; m>>3
    v_lshl_add_u32 v{a.KA}, v251, 8, v{a.KA}
    v_lshrrev_b32 v252, 4, v250            ; g
    v_lshl_add_u32 v{a.KA}, v252, 4, v{a.KA}
    v_bfe_u32 v251, v250, 2, 3             ; (g&1)*4 + r
    v_mul_u32_u24 v{a.VA}, {KV_PSTRIDE}, v251
    v_lshrrev_b32 v251, 5, v250            ; g>>1
    v_lshl_add_u32 v{a.VA}, v251, 8, v{a.VA}
    v_and_b32 v251, 3, v250
    v_lshl_add_u32 v{a.VA}, v251, 3, v{a.VA}
    v_add_u32 v{a.VA}, {4096+2048}, v{a.VA}
    v_lshlrev_b32 v{a.L16}, 4, v250
    s_lshl_b32 s36, s35, 12
    s_add_u32 s36, s36, {MB}
    v_add_u32 v{a.MBA}, s36, v{a.L16}
    s_lshl_b32 s36, s{S_BLK}, 4
    s_add_u32 s36, s36, s{S_B}
    s_lshl_b32 s36, s36, 5
    s_add_u32 s36, s36, s{S_JJ}
    s_mul_i32 s57, s36, 40960
    s_lshl_b32 s36, s35, 10
    s_add_u32 s57, s57, s36
    s_mov_b32 s56, 0x5f800000              ; 2^64
    s_mov_b64 s[48:49], 0
    s_mov_b32 s50, 0
    s_mov_b32 s51, 0
L_{tag}_idle:
    s_barrier
    s_add_u32 s51, s51, 1
    s_cmp_lt_u32 s51, 19
    s_cbranch_scc1 L_{tag}_idle
""")
    o.block(a.epoch(1, 15, cur=False), rec, f"{tag} entry15")
    o.block(a.epoch(0, 0, prev=False), rec, f"{tag} e0 noprev")
    o.t(f"    s_branch L_{tag}_e1")
    o.t(f"L_{tag}_unit:")
    o.block(a.epoch(0, 0), rec, f"{tag} e0")
    o.t(f"L_{tag}_e1:")
    o.t("    s_mov_b32 s51, 0")
    o.block(a.epoch(1, 1), rec, f"{tag} e1")
    o.t(f"L_{tag}_loop:")
    o.block(a.epoch(0, 'plain'), rec, f"{tag} even")
    o.t(f"    s_cmp_eq_u32 s51, 6\n    s_cbranch_scc1 L_{tag}_e15\n    s_add_u32 s51, s51, 1")
    o.block(a.epoch(1, 'plain'), rec, f"{tag} odd")
    o.t(f"    s_branch L_{tag}_loop")
    o.t(f"L_{tag}_e15:")
    o.t(f"    s_cmp_eq_u32 s50, 3\n    s_cbranch_scc1 L_{tag}_last\n    s_add_u32 s50, s50, 1")
    o.block(a.epoch(1, 15), rec, f"{tag} e15")
    o.t(f"    s_branch L_{tag}_unit")
    o.t(f"L_{tag}_last:")
    o.block(a.epoch(1, 15, nxt=False, bar=False) + [wait(lgkm=0)], rec, f"{tag} e15 last")
    o.block(a.epoch(0, 0, cur=False, bar=False), rec, f"{tag} tail")
    o.t("    s_branch L_k1_end")

class PW:
    def __init__(s, NQ):
        s.NQ = NQ
        s.ACC = lambda q, dt: q * 16 + dt * 4
        s.W = lambda st, dt: 112 + st * 44 + dt * 4
        s.XF = lambda st, q: 112 + st * 44 + 16 + q * 4
        s.TMP = lambda i: 200 + (i % 4) * 4
        s.WA = (216, 217); s.XA = 218
        s.WB = (219, 220); s.XB = 221
        s.MW = (222, 223)
        s.VKV, s.VWQ, s.VX = 224, 225, 226
    def reads(s, st):
        out = []
        xr = [ds_r128(s.XF(st, q), s.XA, q * 1024) for q in range(s.NQ)]
        wr = []
        for dt in range(4):
            kl, e = dt >> 1, dt & 1
            for hh in range(2):
                wr.append(ds_rtr(s.W(st, dt) + 2 * hh, s.WA[e], hh * 256 + kl * 64))
        return merge(wr, xr)
    def kv_blob(s, tag):
        t = [f"s_cmp_lt_i32 s60, 4", f"s_cbranch_scc1 L_skip_{tag}",
             "s_lshr_b32 s61, s60, 4", "s_lshl_b32 s61, s61, 20", "s_and_b32 s62, s60, 15", "s_lshl_b32 s62, s62, 13",
             "s_add_u32 s61, s61, s62", "s_add_u32 s61, s61, s58", "s_cmp_ge_i32 s60, 64",
             "s_cselect_b32 s61, 0x4000000, s61", "s_and_b32 s62, s60, 3", "s_lshl_b32 s62, s62, 10",
             "s_add_u32 m0, s62, s59", "s_add_u32 s62, s61, 4096"]
        for p in range(8):
            so = "s61" if p < 4 else "s62"
            t.append(dma(s.VKV, S_KV, so, (p % 4) * 1024, " nt").text)
            if p < 7:
                t.append(f"s_add_u32 m0, m0, {11296 if p == 3 else 7200}")
                t.append("s_nop 0")
        body = "\n    ".join(t) + f"\nL_skip_{tag}:\n    s_add_u32 s60, s60, 1"
        return I(body, "salu")
    def wx_groups(s):
        pre = [salu(x) for x in [
            "s_and_b32 s61, s60, 15", "s_lshr_b32 s62, s60, 4", "s_lshl_b32 s65, s61, 18", "s_lshl_b32 s62, s62, 11",
            "s_add_u32 s65, s65, s62", "s_add_u32 s65, s65, s58", "s_lshl_b32 s66, s61, 6", "s_add_u32 s66, s66, s59",
            "s_cmp_ge_u32 s60, 64", "s_cselect_b32 s65, 0x400000, s65", "s_cselect_b32 s66, 0x400000, s66",
            "s_lshl_b32 s61, s63, 10", "s_add_u32 s61, s61, s67", "s_mul_i32 s62, s63, 10240", "s_add_u32 s62, s62, s68",
            "s_add_u32 s60, s60, 1", "s_add_u32 s63, s63, 1", "s_cmp_eq_u32 s63, 3", "s_cselect_b32 s63, 0, s63"]]
        g = []
        for i in range(4):
            x = [salu(f"s_add_u32 m0, s61, {i*3072 + wpad(i)}")]
            if i: x.append(salu("s_add_u32 s65, s65, 8192"))
            x.append(dma(s.VWQ, S_WQ, "s65"))
            g.append(x)
        for i in range(5):
            x = []
            if i == 0: x.append(salu("s_mov_b32 m0, s62"))
            if i == 4: x.append(salu("s_add_u32 m0, s62, 4096"))
            if i: x.append(salu(f"s_add_u32 s66, s66, {15360 if i < 4 else 65536 - 3*15360}"))
            x.append(dma(s.VX, S_X, "s66", (i % 4) * 1024))
            g.append(x)
        return pre, g
    def addr_update(s):
        return [salu("s_add_u32 s64, s64, 1"), salu("s_cmp_eq_u32 s64, 3"), salu("s_cselect_b32 s64, 0, s64"),
                salu("s_lshl_b32 s69, s64, 10"), salu("s_mul_i32 s70, s64, 10240"),
                valu("v_add_u32", s.WA[0], "s69", s.WB[0]), valu("v_add_u32", s.WA[1], "s69", s.WB[1]),
                valu("v_add_u32", s.XA, "s70", s.XB)]
    def conv(s, q, kl, idx):
        a = s.ACC(q, 2 * kl); t = s.TMP(idx)
        out = [valu("v_mul_f32", a + i, "s56", a + i) for i in range(8)]
        out += [valu("v_cvt_pk_bf16_f32", t + i, a + 2 * i, a + 2 * i + 1) for i in range(4)]
        out += [ds_w64(s.MW[e], t + 2 * e, (q * 4 + kl) * 1024) for e in range(2)]
        return out
    def epoch(s, par, mode, tag, reads=True):
        NQ = s.NQ; st = 1 - par
        big = NQ == 7
        if mode == 'acc':
            mm = [mfma(s.ACC(q, dt), s.W(st, dt), s.XF(st, q)) for dt in range(4) for q in range(NQ)]
        elif mode == 'convz':
            mm = [mfma(s.ACC(q, dt), s.W(st, dt), s.XF(st, q), '0') for q in range(NQ) for dt in range(4)]
        else:
            mm = []
        W = Weave(mm); n = len(mm)
        if reads:
            W.spread(s.reads(par), 0, min(n, 7 if big else 5))
        if mode in ('convz', 'conv'):
            idx = 0
            for q in range(NQ):
                for kl in range(2):
                    W.put(max(0, q * 4 + kl * 2 - 2) if n else 0, s.conv(q, kl, idx)); idx += 1
        if big:
            if mode != 'idle' and mode != 'conv':
                pre, g = s.wx_groups()
                W.put(0, pre)
                lo = 1 if n else 0
                for k, x in enumerate(g):
                    W.put(lo + (k * (n - 4)) // len(g) if n else 0, x)
        else:
            W.put(min(n, 6), s.kv_blob(tag))
        if reads:
            W.put(n, s.addr_update())
        ins = W.flat()
        ins.append(wait(vm=(9 if big else 16), lgkm=0)); ins.append(barrier())
        return ins

def gen_proj(o, NQ, tag):
    p = PW(NQ); big = NQ == 7
    rec = list(range(0, 112))
    qt0 = 0 if big else 7
    o.t(f"L_{tag}:")
    o.t(f"""
    s_and_b32 s35, s{S_WAVE}, 1            ; dhalf
    v_and_b32 v250, 63, v0                 ; lane
    v_bfe_u32 v251, v250, 2, 3             ; p = (g&1)*4 + r
    v_mul_u32_u24 v{p.WB[0]}, 3072, v251
    v_lshrrev_b32 v252, 1, v251
    v_lshl_add_u32 v{p.WB[0]}, v252, 6, v{p.WB[0]}
    v_and_b32 v252, 1, v251
    v_lshl_add_u32 v{p.WB[0]}, v252, 4, v{p.WB[0]}
    v_lshrrev_b32 v252, 5, v250            ; g>>1
    v_lshl_add_u32 v{p.WB[0]}, v252, 9, v{p.WB[0]}
    v_and_b32 v252, 3, v250                ; c
    v_lshl_add_u32 v{p.WB[0]}, v252, 4, v{p.WB[0]}
    s_lshl_b32 s36, s35, 7
    s_add_u32 s36, s36, {WQ_BASE}
    v_add_u32 v{p.WB[0]}, s36, v{p.WB[0]}
    v_and_b32 v252, 1, v250                ; c&1
    v_xor_b32 v253, 1, v252
    v_lshl_add_u32 v{p.WB[1]}, v253, 3, v{p.WB[0]}
    v_lshl_add_u32 v{p.WB[0]}, v252, 3, v{p.WB[0]}
    v_and_b32 v251, 15, v250               ; q
    v_lshlrev_b32 v{p.XB}, 6, v251
    v_lshrrev_b32 v252, 4, v250            ; g
    v_and_b32 v253, 8, v251
    v_lshrrev_b32 v253, 2, v253
    v_xor_b32 v253, v252, v253
    v_lshl_add_u32 v{p.XB}, v253, 4, v{p.XB}
    v_add_u32 v{p.XB}, {X_BASE + qt0*1024}, v{p.XB}
    v_mov_b32 v{p.WA[0]}, v{p.WB[0]}
    v_mov_b32 v{p.WA[1]}, v{p.WB[1]}
    v_mov_b32 v{p.XA}, v{p.XB}
    v_lshlrev_b32 v{p.VKV}, 4, v250
    s_lshl_b32 s36, s35, 11
    s_add_u32 s36, s36, {MB + qt0*4096}
    v_add_u32 v{p.MW[0]}, s36, v{p.VKV}
    v_and_b32 v252, 1, v252                ; g&1
    v_xor_b32 v253, 1, v252
    v_lshl_add_u32 v{p.MW[1]}, v253, 3, v{p.MW[0]}
    v_lshl_add_u32 v{p.MW[0]}, v252, 3, v{p.MW[0]}
    v_lshrrev_b32 v251, 5, v250            ; rho>>1
    v_lshlrev_b32 v{p.VWQ}, 17, v251
    v_bfe_u32 v251, v250, 4, 1             ; rho&1
    v_lshl_add_u32 v{p.VWQ}, v251, 15, v{p.VWQ}
    v_and_b32 v251, 15, v250
    v_lshl_add_u32 v{p.VWQ}, v251, 4, v{p.VWQ}
    v_lshrrev_b32 v251, 2, v250            ; row
    v_lshlrev_b32 v{p.VX}, 10, v251
    v_and_b32 v251, 8, v251
    v_lshrrev_b32 v251, 2, v251
    v_and_b32 v252, 3, v250
    v_xor_b32 v251, v251, v252
    v_lshl_add_u32 v{p.VX}, v251, 4, v{p.VX}
    s_mov_b32 s56, {hex(f2u(CSCALE))}
    s_mov_b32 s64, 0
    s_mov_b32 s50, 0
""")
    if big:
        o.t(f"""
    s_lshl_b32 s58, s{S_JJ}, 8
    s_lshl_b32 s36, s35, 16
    s_add_u32 s58, s58, s36                ; wq0
    s_mul_i32 s59, s{S_B}, 163840
    s_mul_i32 s36, s35, 81920
    s_add_u32 s59, s59, s36                ; x0
    s_mul_i32 s67, s35, {4*3072+128}
    s_add_u32 s67, s67, {WQ_BASE}
    s_mul_i32 s68, s35, 5120
    s_add_u32 s68, s68, {X_BASE}
    s_mov_b32 s60, 0
    s_mov_b32 s63, 0
""")
        ins = []
        for rep in range(2):
            pre, g = p.wx_groups()
            ins += pre + [x for grp in g for x in grp]
        ins += [wait(vm=9), barrier()]
        o.block(ins, (), f"{tag} pre")
    else:
        o.t(f"""
    s_lshl_b32 s58, s{S_B}, 5
    s_add_u32 s58, s58, s{S_JJ}
    s_lshl_b32 s58, s58, 17                ; kv0
    s_lshl_b32 s59, s35, 12
    s_mov_b32 s61, s58
    s_mov_b32 s62, s59
    s_mov_b32 s51, 0
L_{tag}_pre:
    s_mov_b32 m0, s62
    s_add_u32 s36, s61, 4096
""")
        for pp in range(8):
            so = "s61" if pp < 4 else "s36"
            o.t("    " + dma(p.VKV, S_KV, so, (pp % 4) * 1024, " nt").text)
            if pp < 7: o.t(f"    s_add_u32 m0, m0, {11296 if pp == 3 else 7200}\n    s_nop 0")
        o.t(f"""
    s_add_u32 s61, s61, 8192
    s_add_u32 s62, s62, 1024
    s_add_u32 s51, s51, 1
    s_cmp_lt_u32 s51, 4
    s_cbranch_scc1 L_{tag}_pre
    s_sub_u32 s60, -15, s35                ; n = e+4 (K) / e+3 (V) at e=-19
    s_barrier
""")
    o.block(p.epoch(1, 'none', tag + "a"), rec, f"{tag} e-19")
    o.t(f"L_{tag}_pu:")
    o.t("    s_mov_b32 s51, 0")
    o.block(p.epoch(0, 'convz', tag + "b"), rec, f"{tag} convz")
    o.t(f"L_{tag}_odd:")
    o.block(p.epoch(1, 'acc', tag + "c"), rec, f"{tag} odd")
    o.t(f"    s_cmp_eq_u32 s51, 7\n    s_cbranch_scc1 L_{tag}_next\n    s_add_u32 s51, s51, 1")
    o.block(p.epoch(0, 'acc', tag + "d"), rec, f"{tag} even")
    o.t(f"    s_branch L_{tag}_odd")
    o.t(f"L_{tag}_next:")
    o.t(f"    s_add_u32 s50, s50, 1\n    s_cmp_lt_u32 s50, 4\n    s_cbranch_scc1 L_{tag}_pu")
    o.block(p.epoch(0, 'conv', tag + "e", reads=False), rec, f"{tag} conv only (e46)")
    o.t("    s_mov_b32 s51, 0")
    o.t(f"L_{tag}_idle:")
    o.block(p.epoch(1, 'idle', tag + "f", reads=False), rec, f"{tag} idle")
    o.t(f"    s_add_u32 s51, s51, 1\n    s_cmp_lt_u32 s51, 16\n    s_cbranch_scc1 L_{tag}_idle")
    o.t("    s_branch L_k1_end")

def decode_wg(o):
    o.t(f"""
    s_and_b32 s28, s2, 7                   ; xcd
    s_lshr_b32 s29, s2, 3                  ; j
    s_lshr_b32 s{S_BLK}, s28, 2
    s_and_b32 s{S_B}, s28, 3
    s_lshl_b32 s{S_B}, s{S_B}, 2
    s_lshr_b32 s33, s29, 3
    s_add_u32 s{S_B}, s{S_B}, s33
    s_and_b32 s{S_JJ}, s29, 7
    s_mul_i32 s33, s{S_BLK}, 40
    s_add_u32 s4, s0, s33
    s_addc_u32 s5, s1, 0
    v_lshrrev_b32 v1, 6, v0
    s_nop 0
    v_readfirstlane_b32 s{S_WAVE}, v1
""")

def gen_k1(o):
    o.t(f"""
.globl attn_kernel
.p2align 8
.type attn_kernel,@function
attn_kernel:
    s_cmp_ge_u32 s2, 256
    s_cbranch_scc1 L_k1_end
""")
    decode_wg(o)
    o.t(f"""
    s_load_dwordx8 s[36:43], s[4:5], 0     ; x, k, v, wq
    s_load_dwordx2 s[44:45], s[0:1], 96    ; ws
    s_waitcnt lgkmcnt(0)
    s_cmp_eq_u32 s{S_WAVE}, 5
    s_cselect_b32 s{S_KV}, s40, s38
    s_cselect_b32 s{S_KV+1}, s41, s39
    s_mov_b32 s{S_KV+2}, 0x4000000
    s_mov_b32 s{S_KV+3}, 0x20000
    s_mov_b32 s{S_WQ}, s42
    s_mov_b32 s{S_WQ+1}, s43
    s_mov_b32 s{S_WQ+2}, 0x400000
    s_mov_b32 s{S_WQ+3}, 0x20000
    s_mov_b32 s{S_X}, s36
    s_mov_b32 s{S_X+1}, s37
    s_mov_b32 s{S_X+2}, 2621440
    s_mov_b32 s{S_X+3}, 0x20000
    s_mov_b32 s{S_O}, s44
    s_mov_b32 s{S_O+1}, s45
    s_mov_b32 s{S_O+2}, 41943040
    s_mov_b32 s{S_O+3}, 0x20000
    s_cmp_lt_u32 s{S_WAVE}, 2
    s_cbranch_scc1 L_A3
    s_cmp_lt_u32 s{S_WAVE}, 4
    s_cbranch_scc1 L_A2
    s_cmp_lt_u32 s{S_WAVE}, 6
    s_cbranch_scc1 L_P3
""")
    gen_proj(o, 7, "P7")
    gen_proj(o, 3, "P3")
    gen_attn(o, 3, "A3")
    gen_attn(o, 2, "A2")
    o.t("L_k1_end:\n    s_endpgm")

def gen_k2(o):
    ACC = lambda tau, q: (tau * 5 + q) * 4
    BF = lambda st, q: 80 + st * 20 + q * 4
    AF = lambda tau: 160 + tau * 4
    RA = [176, 177, 178, 179]; L16, VW, VOUT, RW, RR = 180, 181, 182, 183, 184
    SLOT = 16896
    S_WO, S_OUT = 12, 16
    o.t(f"""
.globl oproj_kernel
.p2align 8
.type oproj_kernel,@function
oproj_kernel:
    s_cmp_ge_u32 s2, 256
    s_cbranch_scc1 L_k2_end
""")
    decode_wg(o)
    o.t(f"""
    s_load_dwordx2 s[36:37], s[4:5], 32    ; wo
    s_load_dwordx2 s[38:39], s[0:1], 80    ; out
    s_load_dwordx2 s[44:45], s[0:1], 96    ; ws
    s_waitcnt lgkmcnt(0)
    s_mov_b32 s{S_WO}, s36
    s_mov_b32 s{S_WO+1}, s37
    s_mov_b32 s{S_WO+2}, 0x400000
    s_mov_b32 s{S_WO+3}, 0x20000
    s_mov_b32 s{S_OUT}, s38
    s_mov_b32 s{S_OUT+1}, s39
    s_mov_b32 s{S_OUT+2}, 5242880
    s_mov_b32 s{S_OUT+3}, 0x20000
    s_mov_b32 s{S_O}, s44
    s_mov_b32 s{S_O+1}, s45
    s_mov_b32 s{S_O+2}, 41943040
    s_mov_b32 s{S_O+3}, 0x20000
    s_and_b32 s35, s{S_WAVE}, 1            ; qh
    s_lshr_b32 s36, s{S_WAVE}, 1           ; ksp
    v_and_b32 v250, 63, v0
    v_lshlrev_b32 v{L16}, 4, v250
    v_bfe_u32 v251, v250, 2, 2
    v_mul_u32_u24 v252, 1056, v251
    v_lshrrev_b32 v251, 4, v250
    v_lshl_add_u32 v252, v251, 7, v252
    v_and_b32 v251, 3, v250
    v_lshl_add_u32 v252, v251, 3, v252
    s_mul_i32 s37, s36, 4224
""")
    for tau in range(4):
        o.t(f"""
    s_add_u32 s38, s36, {tau}
    s_and_b32 s38, s38, 3
    s_lshl_b32 s38, s38, 5
    s_add_u32 s38, s38, s37
    v_add_u32 v{RA[tau]}, s38, v252
""")
    o.t(f"""
    v_lshrrev_b32 v251, 3, v250
    v_lshlrev_b32 v{VW}, 12, v251
    v_and_b32 v251, 7, v250
    v_lshl_add_u32 v{VW}, v251, 4, v{VW}
    s_lshl_b32 s60, s36, 15
    s_lshl_b32 s38, s35, 11
    s_add_u32 s60, s60, s38
    s_lshl_b32 s38, s{S_JJ}, 7
    s_add_u32 s60, s60, s38
    s_mul_i32 s38, s35, 2112
    s_add_u32 s61, s37, s38
    s_lshl_b32 s38, s{S_BLK}, 4
    s_add_u32 s38, s38, s{S_B}
    s_mul_i32 s62, s38, 1310720
    s_mul_i32 s38, s36, 10240
    s_add_u32 s62, s62, s38
    s_mul_i32 s38, s35, 5120
    s_add_u32 s62, s62, s38
    s_mov_b32 s63, 0
""")
    def issue(st):
        return [salu("s_cmp_ge_u32 s63, 32"), salu("s_cselect_b32 s64, 0x4000000, s60"), salu("s_cselect_b32 s65, 0x4000000, s62"),
                salu(f"s_add_u32 m0, s61, {st*SLOT}"), salu("s_add_u32 s66, s65, 4096"),
                dma(VW, S_WO, "s64"), salu("s_add_u32 m0, m0, 32"), salu("s_add_u32 s63, s63, 1"),
                dma(VW, S_WO, "s64", 1024)] + \
               [bload(BF(st, q), 4, L16, S_O, "s65" if q < 4 else "s66", (q % 4) * 1024) for q in range(5)] + \
               [salu("s_add_u32 s60, s60, 131072"), salu("s_add_u32 s62, s62, 40960")]
    ins = []
    for st in range(3): ins += issue(st)
    ins += [valu("v_mov_b32", r, "0") for r in range(80)]
    ins += [wait(vm=14), barrier()]
    o.block(ins, (), "k2 pre")
    o.t("    s_mov_b32 s51, 0\nL_k2_loop:")
    for st in range(4):
        ins = []
        for tau in range(4):
            for hh in range(2):
                ins.append(ds_rtr(AF(tau) + 2 * hh, RA[tau], st * SLOT + hh * 512))
        ins += issue((st + 3) % 4)
        ins += [mfma(ACC(tau, q), AF(tau), BF(st, q)) for tau in range(4) for q in range(5)]
        ins += [wait(vm=14), barrier()]
        o.block(ins, (), f"k2 round {st}")
    o.t("    s_add_u32 s51, s51, 1\n    s_cmp_lt_u32 s51, 8\n    s_cbranch_scc1 L_k2_loop")
    o.t("    s_waitcnt vmcnt(0)\n    s_barrier")
    ins = []
    for tau in range(1, 4):
        ins += [salu(f"s_add_u32 s38, s36, {tau}"), salu("s_and_b32 s38, s38, 3"), salu("s_lshl_b32 s38, s38, 1"),
                salu("s_add_u32 s38, s38, s35"), salu("s_mul_i32 s38, s38, 15360"), salu(f"s_add_u32 s38, s38, {(tau-1)*5120}"),
                valu("v_add_u32", RW, "s38", L16)]
        ins += [ds_w128(RW, ACC(tau, q), q * 1024) for q in range(5)]
    ins += [salu(f"s_mul_i32 s38, s{S_WAVE}, 15360"), valu("v_add_u32", RR, "s38", L16)]
    ins += [valu("v_and_b32", 251, "15", 250), valu("v_lshlrev_b32", VOUT, "11", 251), valu("v_lshrrev_b32", 251, "4", 250),
            valu("v_lshl_add_u32", VOUT, 251, "3", VOUT),
            salu(f"s_mul_i32 s40, s{S_B}, {160*2048}"), salu(f"s_mul_i32 s38, s35, {80*2048}"), salu("s_add_u32 s40, s40, s38"),
            salu(f"s_lshl_b32 s38, s{S_BLK}, 10"), salu("s_add_u32 s40, s40, s38"),
            salu(f"s_lshl_b32 s38, s{S_JJ}, 7"), salu("s_add_u32 s40, s40, s38"),
            salu("s_lshl_b32 s38, s36, 5"), salu("s_add_u32 s40, s40, s38")]
    ins += [wait(lgkm=0), barrier()]
    for k in range(3):
        ins += [ds_r128(80 + k * 20 + q * 4, RR, k * 5120 + q * 1024) for q in range(5)]
    for q in range(5):
        a = ACC(0, q)
        for k in range(3):
            ins += [valu("v_add_f32", a + i, a + i, 80 + k * 20 + q * 4 + i) for i in range(4)]
        ins += [valu("v_cvt_pk_bf16_f32", a, a, a + 1), valu("v_cvt_pk_bf16_f32", a + 1, a + 2, a + 3)]
        ins.append(bstore(a, 2, VOUT, S_OUT, "s40"))
        ins.append(salu(f"s_add_u32 s40, s40, {16*2048}"))
    o.block(ins, list(range(80)), "k2 epilogue")
    o.t("L_k2_end:\n    s_endpgm")

def descriptor(name, vgpr, sgpr=102):
    return f"""
.amdhsa_kernel {name}
  .amdhsa_next_free_vgpr {vgpr}
  .amdhsa_next_free_sgpr {sgpr}
  .amdhsa_accum_offset {vgpr}
  .amdhsa_group_segment_fixed_size 0
  .amdhsa_kernarg_size 104
  .amdhsa_user_sgpr_count 2
  .amdhsa_user_sgpr_kernarg_segment_ptr 1
  .amdhsa_system_sgpr_workgroup_id_x 1
.end_amdhsa_kernel
"""

def main(path):
    o = Out()
    o.t(f"""; generated by gen/gen.py  (two launches: fused Q-projection + attention, then output projection)
; @launch kernel=attn_kernel grid=(256,1,1) block=(512,1,1) lds={LDS1}
; @launch kernel=oproj_kernel grid=(256,1,1) block=(512,1,1) lds=122880
.amdgcn_target "amdgcn-amd-amdhsa--gfx950"
.text""")
    gen_k1(o)
    gen_k2(o)
    o.t('.section .rodata,"a"\n.p2align 6')
    o.t(descriptor("attn_kernel", 256))
    o.t(".p2align 6")
    o.t(descriptor("oproj_kernel", 256))
    open(path, "w").write(o.text())

if __name__ == "__main__":
    main(sys.argv[1] if len(sys.argv) > 1 else f"cdna_kernels/{NAME}.s")
```
